```python
import torch

def _softmax(x, axis=-1):
    return torch.softmax(x, dim=axis)

def _gelu(x):
    return torch.nn.functional.gelu(x, approximate='tanh')

def _silu(x):
    return torch.nn.functional.silu(x)

def _sigmoid(x):
    return torch.sigmoid(x)

def _layernorm(x, axis=-1, eps=1e-05):
    m = x.mean(dim=axis, keepdim=True)
    v = x.var(dim=axis, keepdim=True, unbiased=False)
    return (x - m) / torch.sqrt(v + eps)

def _scatter_add(tgt, idx, src, axis=0):
    return tgt.clone().index_add_(axis, idx, src)

def _segment_sum(src, seg, n):
    out = torch.zeros((n,) + src.shape[1:], dtype=src.dtype)
    return out.index_add_(0, seg, src)

def _pad(x, pw):
    flat = tuple((v for pair in reversed(pw) for v in pair))
    return torch.nn.functional.pad(x, flat)
kernel_name = 'adaLN_cond__mha_block_cached__geglu_ffn__decode'

def setup_inputs():

    _w = lambda a: (lambda t: t.to(torch.bfloat16) if t.is_floating_point() else t)(torch.as_tensor(a))

    def _A_setup():
        B, Sq, D = (8, 1, 448)
        H, Sk, Dh = (16, 4096, 256)
        return {'x': _w((lambda *s: torch.randn(*s, dtype=torch.bfloat16) * 0.05)(B, Sq, D)), 'k_cache': _w((lambda *s: torch.randn(*s, dtype=torch.bfloat16) * 3.2)(B, H, Sk, Dh)), 'v_cache': _w((lambda *s: torch.randn(*s, dtype=torch.bfloat16) * 0.4)(B, H, Sk, Dh)), 'wq': _w((lambda *s: torch.randn(*s, dtype=torch.bfloat16) * 3.2)(D, H * Dh) * D ** (-0.5)), 'wo': _w((lambda *s: torch.randn(*s, dtype=torch.bfloat16) * 0.4)(H * Dh, D) * (H * Dh) ** (-0.5))}
    _A_in = _A_setup()

    def _B_setup():
        B, S, D, F = (8, 1, 448, 1792)
        return {'x': _w((lambda *s: torch.randn(*s, dtype=torch.bfloat16) * 0.05)(B, S, D)), 'w_gate': _w((lambda *s: torch.randn(*s, dtype=torch.bfloat16) * 0.05)(D, F)), 'w_up': _w((lambda *s: torch.randn(*s, dtype=torch.bfloat16) * 0.05)(D, F)), 'w_down': _w((lambda *s: torch.randn(*s, dtype=torch.bfloat16) * 0.05)(F, D))}
    _B_in = _B_setup()
    return {'A_x': _A_in['x'], 'A_k_cache': _A_in['k_cache'], 'A_v_cache': _A_in['v_cache'], 'A_wq': _A_in['wq'], 'A_wo': _A_in['wo'], 'B_x': _B_in['x'], 'B_w_gate': _B_in['w_gate'], 'B_w_up': _B_in['w_up'], 'B_w_down': _B_in['w_down'], 'c': _w((lambda *s: torch.randn(*s, dtype=torch.bfloat16) * 0.2)(8, 448) * 8.0), 'w_mod': _w((lambda *s: torch.randn(*s, dtype=torch.bfloat16) * 0.2)(448, 6 * 448) * 448 ** (-0.5) * 8.0)}

def reference(A_x, A_k_cache, A_v_cache, A_wq, A_wo, B_x, B_w_gate, B_w_up, B_w_down, c, w_mod):

    def _A_ref(x, k_cache, v_cache, wq, wo):
        B, Sq, D = x.shape
        H, Dh = (16, 256)
        q = (lambda x, *d: x.permute(*d))((x @ wq).reshape(B, Sq, H, Dh), 0, 2, 1, 3)
        scores = torch.einsum('bhqd,bhkd->bhqk', q, k_cache) * Dh ** (-0.5)
        p = _softmax(scores, axis=-1)
        o = torch.einsum('bhqk,bhkd->bhqd', p, v_cache)
        return (lambda x, *d: x.permute(*d))(o, 0, 2, 1, 3).reshape(B, Sq, H * Dh) @ wo

    def _B_ref(x, w_gate, w_up, w_down):
        return _gelu(x @ w_gate) * (x @ w_up) @ w_down
    x = A_x
    mod = (_silu(c) @ w_mod).reshape(c.shape[0], 6, 1, -1)
    sa, ca, ga, sb, cb, gb = (mod[:, 0].clone(), mod[:, 1].clone(), mod[:, 2].clone(), mod[:, 3].clone(), mod[:, 4].clone(), mod[:, 5].clone())
    h = _layernorm(x, axis=-1) * (1 + ca) + sa
    x = x + ga * _A_ref(h, A_k_cache, A_v_cache, A_wq, A_wo)
    h = _layernorm(x, axis=-1) * (1 + cb) + sb
    x = x + gb * _B_ref(h, B_w_gate, B_w_up, B_w_down)
    return x
```

```python
import sys
KNAME = "adaLN_cond__mha_block_cached__geglu_ffn__decode_kernel"
def gen(NW=8, DEPTH=16, FLAGS="", PATK="inter", PATV="half", WORK=True, LDS=98304, MAP="xcd", STAMP=False, INFL=None):
    R = DEPTH; D = INFL or DEPTH
    L = []
    A = L.append
    A(f"; @launch grid=(256,1,1) block=({NW*64},1,1) lds={LDS}")
    A('.amdgcn_target "amdgcn-amd-amdhsa--gfx950"')
    A(".text"); A(f".globl {KNAME}"); A(".p2align 8"); A(f".type {KNAME},@function"); A(f"{KNAME}:")
    A("  s_cmp_ge_u32 s2, 256"); A("  s_cbranch_scc1 L_done")
    A("  s_load_dwordx4 s[4:7], s[0:1], 8")
    if STAMP:
        A("  s_memrealtime s[40:41]"); A("  s_load_dwordx2 s[44:45], s[0:1], 104")
    if MAP == "xcd":
        A("  s_and_b32 s20, s2, 7")
        A("  s_lshr_b32 s21, s2, 3")
        A("  s_and_b32 s22, s21, 1")
        A("  s_lshl_b32 s20, s20, 1")
        A("  s_add_u32 s20, s20, s22")
        A("  s_lshr_b32 s21, s21, 1")
        A("  s_lshr_b32 s23, s21, 1")
        A("  s_and_b32 s24, s21, 1")
    else:
        A("  s_lshr_b32 s20, s2, 1"); A("  s_and_b32 s20, s20, 15")
        A("  s_lshr_b32 s23, s2, 5")
        A("  s_and_b32 s24, s2, 1")
    A("  s_lshl_b32 s25, s23, 4"); A("  s_add_u32 s25, s25, s20")
    A("  s_lshl_b32 s25, s25, 21")
    A("  v_lshrrev_b32 v1, 6, v0")
    A("  s_nop 0")
    A("  v_readfirstlane_b32 s26, v1")
    A("  v_and_b32 v2, 63, v0")
    A("  s_waitcnt lgkmcnt(0)")
    A("  s_lshl_b32 s27, s24, 20"); A("  s_add_u32 s27, s27, s25")
    A("  s_add_u32 s8, s4, s27"); A("  s_addc_u32 s9, s5, 0"); A("  s_mov_b32 s10, 0x100000"); A("  s_mov_b32 s11, 0x20000")
    if PATV == "half":
        A("  s_add_u32 s12, s6, s25"); A("  s_addc_u32 s13, s7, 0"); A("  s_mov_b32 s14, 0x200000"); A("  s_mov_b32 s15, 0x20000")
    else:
        A("  s_add_u32 s12, s6, s27"); A("  s_addc_u32 s13, s7, 0"); A("  s_mov_b32 s14, 0x100000"); A("  s_mov_b32 s15, 0x20000")
    nper = 1024 // NW
    A("  v_lshlrev_b32 v3, 4, v2")
    if PATK == "inter":
        A("  s_lshl_b32 s28, s26, 10"); kstep = NW * 1024
    else:
        A(f"  s_mul_i32 s28, s26, {nper*1024}"); kstep = 1024
    if PATV == "half":
        A("  v_lshrrev_b32 v5, 4, v2"); A("  v_lshlrev_b32 v5, 9, v5"); A("  v_and_b32 v4, 15, v2"); A("  v_lshlrev_b32 v4, 4, v4"); A("  v_add_u32 v4, v4, v5")
        A("  s_lshl_b32 s30, s24, 8"); A("  v_add_u32 v4, s30, v4")
        if PATK == "inter":
            A("  s_lshl_b32 s29, s26, 11"); vstep = NW * 2048
        else:
            A(f"  s_mul_i32 s29, s26, {nper*2048}"); vstep = 2048
    else:
        A("  v_mov_b32 v4, v3")
        A("  s_mov_b32 s29, s28"); vstep = kstep
    for r in range(8, 24): A(f"  v_mov_b32 v{r}, 0")
    BUF = 32
    def ldk(slot):
        A(f"  buffer_load_dwordx4 v[{BUF+4*slot}:{BUF+4*slot+3}], v3, s[8:11], s28 offen {FLAGS}"); A(f"  s_add_u32 s28, s28, {kstep}")
    def ldv(slot):
        A(f"  buffer_load_dwordx4 v[{BUF+4*slot}:{BUF+4*slot+3}], v4, s[12:15], s29 offen {FLAGS}"); A(f"  s_add_u32 s29, s29, {vstep}")
    def usek(slot):
        if not WORK: return
        for e in range(4): A(f"  v_dot2c_f32_bf16 v{8+(slot&3)}, v{BUF+4*slot+e}, v{24+e}")
    def usev(slot):
        if not WORK: return
        for e in range(4):
            A(f"  v_lshlrev_b32 v6, 16, v{BUF+4*slot+e}"); A(f"  v_and_b32 v7, 0xffff0000, v{BUF+4*slot+e}")
            A(f"  v_fmac_f32 v{12+2*e}, v6, v28"); A(f"  v_fmac_f32 v{13+2*e}, v7, v28")
    for s in range(D): ldk(s % R)
    assert nper % R == 0
    A(f"  s_mov_b32 s31, {nper//R - 1}")
    if nper // R > 1:
        A("L_k:")
        for s in range(R):
            A(f"  s_waitcnt vmcnt({D-1})"); usek(s); ldk((s + D) % R)
        A("  s_sub_u32 s31, s31, 1"); A("  s_cmp_lg_u32 s31, 0"); A("  s_cbranch_scc1 L_k")
    for s in range(R):
        A(f"  s_waitcnt vmcnt({D-1})"); usek(s)
        if s + D < R: ldk((s + D) % R)
        else: ldv((s + D) % R)
    A(f"  s_mov_b32 s31, {nper//R - 1}")
    if nper // R > 1:
        A("L_v:")
        for s in range(R):
            A(f"  s_waitcnt vmcnt({D-1})"); usev(s); ldv((s + D) % R)
        A("  s_sub_u32 s31, s31, 1"); A("  s_cmp_lg_u32 s31, 0"); A("  s_cbranch_scc1 L_v")
    for s in range(R):
        if s + D < R:
            A(f"  s_waitcnt vmcnt({D-1})"); usev(s); ldv((s + D) % R)
        else:
            A(f"  s_waitcnt vmcnt({R-1-s})"); usev(s)
    if STAMP:
        A("  s_memrealtime s[42:43]"); A("  s_waitcnt lgkmcnt(0)")
        A("  v_mov_b32 v10, s40"); A("  v_mov_b32 v11, s41"); A("  v_mov_b32 v12, s42"); A("  v_mov_b32 v13, s43")
        A("  s_getreg_b32 s46, hwreg(HW_REG_XCC_ID)")
        A(f"  s_mul_i32 s47, s2, {NW}"); A("  s_add_u32 s47, s47, s26"); A("  s_lshl_b32 s47, s47, 5")
        A("  s_getreg_b32 s50, hwreg(HW_REG_HW_ID)"); A("  v_mov_b32 v14, s47"); A("  v_mov_b32 v16, s46"); A("  v_mov_b32 v17, s50")
        A("  v_cmp_eq_u32 vcc, 0, v2"); A("  s_and_saveexec_b64 s[48:49], vcc")
        A("  global_store_dwordx4 v14, v[10:13], s[44:45]"); A("  global_store_dwordx2 v14, v[16:17], s[44:45] offset:16")
        A("  s_waitcnt vmcnt(0)")
    A("L_done:"); A("  s_endpgm")
    nv = BUF + 4 * DEPTH
    A('.section .rodata,"a"'); A(".p2align 6"); A(f".amdhsa_kernel {KNAME}")
    A(f"  .amdhsa_next_free_vgpr {nv}"); A("  .amdhsa_next_free_sgpr 64"); A(f"  .amdhsa_accum_offset {(nv+3)//4*4}")
    A("  .amdhsa_group_segment_fixed_size 0"); A("  .amdhsa_kernarg_size 112"); A("  .amdhsa_user_sgpr_count 2")
    A("  .amdhsa_user_sgpr_kernarg_segment_ptr 1"); A("  .amdhsa_system_sgpr_workgroup_id_x 1"); A(".end_amdhsa_kernel")
    return "\n".join(L) + "\n"
if __name__ == "__main__":
    variants = {
      "s_w8_d16": dict(NW=8, DEPTH=16),
      "s_w8_d16_nt": dict(NW=8, DEPTH=16, FLAGS="nt"),
      "s_w8_d8_nt": dict(NW=8, DEPTH=8, FLAGS="nt"),
      "s_w8_d32_nt": dict(NW=8, DEPTH=32, FLAGS="nt"),
      "s_w4_d32_nt": dict(NW=4, DEPTH=32, FLAGS="nt"),
      "s_w16_d8_nt": dict(NW=16, DEPTH=8, FLAGS="nt"),
      "s_w8_d16_nt_contig": dict(NW=8, DEPTH=16, FLAGS="nt", PATK="contig"),
      "s_w8_d16_nt_fullv": dict(NW=8, DEPTH=16, FLAGS="nt", PATV="full"),
      "s_w8_d16_nt_lin": dict(NW=8, DEPTH=16, FLAGS="nt", MAP="lin"),
    }
    for n, kw in variants.items():
        open(n + ".s", "w").write(gen(**kw))
    print(" ".join(n + ".s" for n in variants))
```

```python
from gen_stream import KNAME
def gen(D=6, VPAT="half", NW=4):
    L = []; A = L.append
    A(f"; @launch grid=(256,1,1) block=({NW*64},1,1) lds=98304")
    A('.amdgcn_target "amdgcn-amd-amdhsa--gfx950"')
    A(".text"); A(f".globl {KNAME}"); A(".p2align 8"); A(f".type {KNAME},@function"); A(f"{KNAME}:")
    A("  s_cmp_ge_u32 s2, 256"); A("  s_cbranch_scc1 L_done")
    A("  s_memrealtime s[40:41]")
    A("  s_load_dwordx4 s[4:7], s[0:1], 8"); A("  s_load_dwordx2 s[44:45], s[0:1], 104")
    for k in range(16): A(f"  s_mov_b32 s{80+k}, 0")
    A("  s_and_b32 s20, s2, 7"); A("  s_lshr_b32 s21, s2, 3"); A("  s_and_b32 s22, s21, 1"); A("  s_lshl_b32 s20, s20, 1"); A("  s_add_u32 s20, s20, s22")
    A("  s_lshr_b32 s21, s21, 1"); A("  s_lshr_b32 s23, s21, 1"); A("  s_and_b32 s24, s21, 1")
    A("  s_lshl_b32 s25, s23, 4"); A("  s_add_u32 s25, s25, s20"); A("  s_lshl_b32 s25, s25, 21")
    A("  v_lshrrev_b32 v1, 6, v0"); A("  s_nop 0"); A("  v_readfirstlane_b32 s26, v1"); A("  v_and_b32 v2, 63, v0")
    A("  s_waitcnt lgkmcnt(0)")
    A("  s_mov_b32 s80, s40")
    A("  s_lshl_b32 s27, s24, 20"); A("  s_add_u32 s27, s27, s25")
    A("  s_add_u32 s8, s4, s27"); A("  s_addc_u32 s9, s5, 0"); A("  s_mov_b32 s10, 0x100000"); A("  s_mov_b32 s11, 0x20000")
    if VPAT in ("half", "half2"):
        A("  s_add_u32 s12, s6, s25"); A("  s_addc_u32 s13, s7, 0"); A("  s_mov_b32 s14, 0x200000"); A("  s_mov_b32 s15, 0x20000")
    else:
        A("  s_add_u32 s12, s6, s27"); A("  s_addc_u32 s13, s7, 0"); A("  s_mov_b32 s14, 0x100000"); A("  s_mov_b32 s15, 0x20000")
    A("  v_lshlrev_b32 v3, 4, v2"); A(f"  s_lshl_b32 s28, s26, 10")
    kstep = NW * 1024
    if VPAT == "half":
        A("  v_lshrrev_b32 v5, 4, v2"); A("  v_lshlrev_b32 v5, 9, v5"); A("  v_and_b32 v4, 15, v2"); A("  v_lshlrev_b32 v4, 4, v4"); A("  v_add_u32 v4, v4, v5")
        A("  s_lshl_b32 s30, s24, 8"); A("  v_add_u32 v4, s30, v4"); A("  s_lshl_b32 s29, s26, 11"); vstep = NW * 2048
    else:
        A("  v_mov_b32 v4, v3"); A("  s_mov_b32 s29, s28"); vstep = kstep
    BUF = 32; R = 8; n = 1024 // NW
    def ld(j):
        sl = j % R
        if j < n: A(f"  buffer_load_dwordx4 v[{BUF+4*sl}:{BUF+4*sl+3}], v3, s[8:11], s28 offen nt"); A(f"  s_add_u32 s28, s28, {kstep}")
        else: A(f"  buffer_load_dwordx4 v[{BUF+4*sl}:{BUF+4*sl+3}], v4, s[12:15], s29 offen nt"); A(f"  s_add_u32 s29, s29, {vstep}")
    def st(i): A("  s_memrealtime s[78:79]"); A("  s_waitcnt lgkmcnt(0)"); A(f"  s_mov_b32 s{80+i}, s78")
    for j in range(D): ld(j)
    def seg(j0, j1, lab):
        cnt = (j1 - j0) // R
        A(f"  s_mov_b32 s31, {cnt}"); A(f"{lab}:")
        for j in range(j0, j0 + R):
            A(f"  s_waitcnt vmcnt({D-1})"); ld(j + D)
        A("  s_sub_u32 s31, s31, 1"); A("  s_cmp_lg_u32 s31, 0"); A(f"  s_cbranch_scc1 {lab}")
    q = n // 4
    seg(0, q, "La"); st(1); seg(q, 2*q, "Lb"); st(2); seg(2*q, 3*q, "Lc"); st(3); seg(3*q, n - R, "Ld")
    for j in range(n - R, n): A(f"  s_waitcnt vmcnt({D-1})"); ld(j + D)
    st(4)
    seg(n, n + q, "Le"); st(5); seg(n + q, n + 2*q, "Lf"); st(6); seg(n + 2*q, n + 3*q, "Lg"); st(7); seg(n + 3*q, 2*n - R, "Lh")
    for j in range(2*n - R, 2*n):
        A(f"  s_waitcnt vmcnt({min(D-1, 2*n-1-j)})")
        if j + D < 2*n: ld(j + D)
    st(8)
    A("  s_mov_b32 s95, s88")
    A(f"  s_lshl_b32 s64, s2, 3"); A("  s_add_u32 s64, s64, s26"); A("  s_lshl_b32 s64, s64, 6"); A("  s_add_u32 s64, s64, 0x400000")
    A("  v_mov_b32 v20, s64"); A("  s_mov_b64 exec, 1")
    for k in range(4):
        for e in range(4): A(f"  v_mov_b32 v{24+e}, s{80+4*k+e}")
        A(f"  global_store_dwordx4 v20, v[24:27], s[44:45] offset:{16*k}"); A("  s_nop 1")
    A("L_done:"); A("  s_endpgm")
    A('.section .rodata,"a"'); A(".p2align 6"); A(f".amdhsa_kernel {KNAME}")
    A(f"  .amdhsa_next_free_vgpr 96"); A("  .amdhsa_next_free_sgpr 102"); A(f"  .amdhsa_accum_offset 96")
    A("  .amdhsa_group_segment_fixed_size 0"); A("  .amdhsa_kernarg_size 112"); A("  .amdhsa_user_sgpr_count 2")
    A("  .amdhsa_user_sgpr_kernarg_segment_ptr 1"); A("  .amdhsa_system_sgpr_workgroup_id_x 1"); A(".end_amdhsa_kernel")
    return "\n".join(L) + "\n"
open("pr_half6.s", "w").write(gen(6, "half"))
open("pr_full6.s", "w").write(gen(6, "full"))
open("pr_half7.s", "w").write(gen(7, "half"))
open("pr_full7.s", "w").write(gen(7, "full"))
open("pr_half5.s", "w").write(gen(5, "half"))
```
